```python
import torch

def _softmax(x, axis=-1):
    return torch.softmax(x, dim=axis)
def _gelu(x):
    return torch.nn.functional.gelu(x, approximate="tanh")
def _silu(x):
    return torch.nn.functional.silu(x)
def _sigmoid(x):
    return torch.sigmoid(x)
def _layernorm(x, axis=-1, eps=1e-5):
    m = x.mean(dim=axis, keepdim=True)
    v = x.var(dim=axis, keepdim=True, unbiased=False)
    return (x - m) / torch.sqrt(v + eps)
def _scatter_add(tgt, idx, src, axis=0):
    return tgt.clone().index_add_(axis, idx, src)
def _segment_sum(src, seg, n):
    out = torch.zeros((n,) + src.shape[1:], dtype=src.dtype)
    return out.index_add_(0, seg, src)
def _pad(x, pw):
    flat = tuple(v for pair in reversed(pw) for v in pair)
    return torch.nn.functional.pad(x, flat)

kernel_name = 'standalone__convnext_block__vision'

def setup_inputs():

    _w = (lambda a: (lambda t: t.to(torch.bfloat16) if t.is_floating_point() else t)(torch.as_tensor(a)))
    H = W = 224
    C = 192
    return {
        "x": _w((lambda *s: torch.randn(*s, dtype=torch.bfloat16) * 0.05)(1, H, W, C)),
        "dw": _w((lambda *s: torch.randn(*s, dtype=torch.bfloat16) * 0.05)(7, 7, C)),
        "w1": _w((lambda *s: torch.randn(*s, dtype=torch.bfloat16) * 0.05)(C, 4 * C)),
        "w2": _w((lambda *s: torch.randn(*s, dtype=torch.bfloat16) * 0.05)(4 * C, C)),
    }

def reference(x, dw, w1, w2):
    B, H, W, C = x.shape
    pad = 3
    xp = _pad(x, ((0,0),(pad,pad),(pad,pad),(0,0)))
    out = torch.zeros_like(x)
    for i in range(7):
        for j in range(7):
            out = out + xp[:, i:i+H, j:j+W, :] * dw[i, j][None, None, None, :]
    h = _layernorm(out, axis=-1)
    return x + _gelu(h @ w1) @ w2
```

```python
import re

REG_RE = re.compile(r'^([vas])(\d+)$')
RANGE_RE = re.compile(r'^([vas])\[(\d+):(\d+)\]$')
TRANS = ('v_exp_', 'v_rcp_', 'v_rsq_', 'v_log_', 'v_sqrt_', 'v_sin_', 'v_cos_')


def regs_of(tok):
    tok = tok.strip()
    if tok.startswith('-'):
        tok = tok[1:]
    if tok.startswith('abs(') or tok.startswith('|'):
        tok = tok.strip('|').replace('abs(', '').rstrip(')')
    m = REG_RE.match(tok)
    if m:
        return [m.group(1) + m.group(2)]
    m = RANGE_RE.match(tok)
    if m:
        return [m.group(1) + str(i) for i in range(int(m.group(2)), int(m.group(3)) + 1)]
    if tok == 'vcc':
        return ['vcc']
    if tok == 'exec':
        return ['exec']
    if tok == 'm0':
        return ['m0']
    return []


class Ins:
    __slots__ = ('text', 'op', 'dst', 'src', 'kind', 'passes', 'srcC', 'srcAB', 'large_store', 'ws')

    def __init__(self, text):
        self.text = text
        t = text.split(';')[0].strip()
        parts = t.split(None, 1)
        self.op = op = parts[0]
        rest = parts[1] if len(parts) > 1 else ''
        ops = []
        for o in rest.split(','):
            o = o.strip()
            if o:
                ops.append(o)
        mods = []
        if ops:
            sp = ops[-1].split()
            ops[-1] = sp[0]
            mods = sp[1:]
        clean = []
        for o in ops:
            sp = o.split()
            clean.append(sp[0])
            mods += sp[1:]
        ops = clean
        R = [regs_of(o) for o in ops]
        self.dst, self.src = [], []
        self.passes = 0
        self.srcC, self.srcAB = [], []
        self.large_store = False
        self.ws = 1
        flat = lambda L: [x for l in L for x in l]
        if op.endswith(':'):
            self.kind = 'label'
            self.ws = 0
        elif op.startswith('.'):
            self.kind = 'dir'
            self.ws = 0
        elif op.startswith('v_mfma'):
            self.kind = 'mfma'
            self.dst = R[0]
            self.srcAB = R[1] + R[2]
            self.srcC = R[3]
            self.src = self.srcAB + self.srcC
            self.passes = 8 if '32x32x16' in op else 4
        elif op.startswith('ds_read'):
            self.kind = 'dsr'
            self.dst = R[0]
            self.src = R[1]
        elif op.startswith('ds_write'):
            self.kind = 'dsw'
            self.src = flat(R)
        elif op.startswith('buffer_load') or op.startswith('global_load'):
            if 'lds' in mods or '_lds_' in op:
                self.kind = 'dma'
                self.src = flat(R) + ['m0']
            else:
                self.kind = 'vld'
                self.dst = R[0]
                self.src = flat(R[1:])
        elif op.startswith('buffer_store') or op.startswith('global_store'):
            self.kind = 'vst'
            self.src = flat(R)
            self.large_store = op.endswith('x4') or op.endswith('x3')
        elif op.startswith('buffer_atomic') or op.startswith('global_atomic'):
            self.kind = 'vst'
            self.src = flat(R)
            if 'sc0' in mods:
                self.kind = 'vld'
                self.dst = R[0]
        elif op.startswith('buffer_inv') or op.startswith('buffer_wbl2'):
            self.kind = 'vst'
        elif op.startswith('v_'):
            self.kind = 'trans' if op.startswith(TRANS) else 'valu'
            if op.startswith('v_swap') or 'permlane' in op:
                self.dst = R[0] + R[1]
                self.src = R[0] + R[1]
            elif op.startswith('v_cmp'):
                self.dst = R[0]
                self.src = flat(R[1:])
            elif op.startswith(('v_fmac', 'v_dot2c', 'v_writelane')):
                self.dst = R[0]
                self.src = flat(R)
            elif op.startswith(('v_add_co', 'v_addc_co', 'v_sub_co')):
                self.dst = R[0] + R[1]
                self.src = flat(R[2:])
            elif op == 'v_nop':
                pass
            else:
                self.dst = R[0]
                self.src = flat(R[1:])
        elif op.startswith('s_'):
            self.kind = 'salu'
            if op == 's_nop':
                self.ws = int(ops[0], 0) + 1
            elif op in ('s_waitcnt', 's_barrier', 's_endpgm', 's_setprio', 's_branch', 's_sleep') or op.startswith('s_cbranch'):
                pass
            elif op.startswith('s_cmp'):
                self.src = flat(R)
            elif op.startswith('s_load') or op.startswith('s_memtime') or op.startswith('s_memrealtime'):
                self.kind = 'smem'
                self.dst = R[0]
                self.src = flat(R[1:])
            elif 'saveexec' in op:
                self.dst = R[0] + ['exec']
                self.src = flat(R[1:]) + ['exec']
            else:
                self.dst = R[0]
                self.src = flat(R[1:])
        else:
            raise ValueError('unknown instruction ' + text)


class Asm:
    def __init__(self):
        self.ins = []
        self.lg = []
        self.vm = []
        self.auto_log = []

    def _need(self, regs):
        regs = set(regs)
        lg = vm = None
        for k, d in enumerate(self.lg):
            if d & regs:
                lg = len(self.lg) - 1 - k
        for k, d in enumerate(self.vm):
            if d & regs:
                vm = len(self.vm) - 1 - k
        return lg, vm

    def wait(self, lg=None, vm=None):
        parts = []
        if vm is not None:
            vm = min(vm, 63)
            parts.append('vmcnt(%d)' % vm)
            if len(self.vm) > vm:
                self.vm = self.vm[len(self.vm) - vm:] if vm else []
        if lg is not None:
            lg = min(lg, 15)
            parts.append('lgkmcnt(%d)' % lg)
            if len(self.lg) > lg:
                self.lg = self.lg[len(self.lg) - lg:] if lg else []
        if parts:
            self.ins.append(Ins('s_waitcnt ' + ' '.join(parts)))

    def need(self, *toks, force=False):
        regs = []
        for t in toks:
            regs += regs_of(t)
        lg, vm = self._need(regs)
        if lg is None and vm is None:
            if force:
                self.ins.append(Ins('s_nop 0'))
            return False
        self.wait(lg, vm)
        return True

    def tag_vm(self, tag):
        self.vm[-1].add(tag)

    def need_tag(self, tag):
        lg, vm = self._need([tag])
        if lg is not None or vm is not None:
            self.wait(lg, vm)

    def __call__(self, text):
        for line in text.strip().split('\n'):
            line = line.strip()
            if not line or line.startswith(';'):
                continue
            i = Ins(line)
            if i.op == 's_waitcnt':
                m = re.search(r'vmcnt\((\d+)\)', line)
                n = re.search(r'lgkmcnt\((\d+)\)', line)
                self.wait(int(n.group(1)) if n else None, int(m.group(1)) if m else None)
                continue
            lg, vm = self._need(i.src + i.dst)
            if lg is not None or vm is not None:
                self.auto_log.append((len(self.ins), line, lg, vm))
                self.wait(lg, vm)
            self.ins.append(i)
            if i.kind in ('dsr', 'dsw'):
                self.lg.append(set(i.dst))
            elif i.kind in ('vld', 'vst', 'dma'):
                self.vm.append(set(i.dst))

    def state(self):
        return ([frozenset(x) for x in self.lg], [frozenset(x) for x in self.vm])

    def text(self):
        out = []
        for i in self.ins:
            out.append(i.text if i.kind in ('label', 'dir') else '    ' + i.text)
        return '\n'.join(out) + '\n'


def check_hazards(seq, verbose=True):
    bad = []
    n = len(seq)
    for idx, p in enumerate(seq):
        if p.kind in ('label', 'dir'):
            continue
        rules = []
        valu_like = p.kind in ('valu', 'trans')
        vd = [r for r in p.dst if r[0] in 'va' and r != 'vcc']
        sd = [r for r in p.dst if r[0] == 's' or r == 'vcc']
        if valu_like and vd:
            rules.append((vd, 2, lambda c: c.src if c.kind == 'mfma' else [], 'VALU->MFMA src'))
            rules.append((vd, 2, lambda c: c.src if ('permlane' in c.op or 'dpp' in c.text or 'quad_perm' in c.text or 'row_' in c.text) else [], 'VALU->permlane/dpp'))
            rules.append((vd, 1, lambda c: c.src if c.op.startswith(('v_readfirstlane', 'v_readlane')) else [], 'VALU->readlane'))
        if p.kind == 'trans':
            rules.append((vd, 1, lambda c: c.src if c.kind == 'valu' else [], 'trans->VALU'))
        if valu_like and sd:
            rules.append((sd, 5, lambda c: c.src if c.kind in ('vld', 'vst', 'dma') else [], 'VALU sgpr->VMEM'))
            rules.append((sd, 2, lambda c: (c.src + (['vcc'] if c.op.startswith('v_cndmask') else [])) if c.kind in ('valu', 'trans') else [], 'VALU sgpr->VALU'))
            rules.append((sd, 4, lambda c: c.src if c.op.startswith(('v_readlane', 'v_writelane')) else [], 'VALU sgpr->lane sel'))
        if p.kind == 'mfma':
            w = 12 if p.passes == 8 else 8
            rules.append((p.dst, w, lambda c: (c.src + c.dst) if c.kind in ('valu', 'trans', 'dsr', 'dsw', 'vld', 'vst', 'dma') else [], 'MFMA D->VALU/mem'))
            rules.append((p.dst, w, lambda c: c.srcAB if c.kind == 'mfma' else [], 'MFMA D->MFMA AB'))
            wo = 10 if p.passes == 8 else 6
            rules.append((p.dst, wo, lambda c, p=p: c.srcC if (c.kind == 'mfma' and (c.srcC != p.dst or c.passes != p.passes)) else [], 'MFMA D->MFMA C overlap'))
            rules.append((p.dst, wo, lambda c, p=p: c.dst if (c.kind == 'mfma' and c.srcC != p.dst) else [], 'MFMA D->MFMA D WAW'))
            wc = 7 if p.passes == 8 else 3
            rules.append((p.srcC, wc, lambda c: c.dst if c.kind in ('valu', 'trans') else [], 'MFMA C WAR VALU'))
        if p.kind == 'vst' and p.large_store:
            rules.append(([r for r in p.src if r[0] in 'va'], 2, lambda c: c.dst if c.kind in ('valu', 'trans', 'mfma') else [], 'store data WAR'))
        if p.kind == 'dsw' and ('b128' in p.op or 'b96' in p.op or '2_b64' in p.op):
            rules.append(([r for r in p.src if r[0] in 'va'], 2, lambda c: c.dst if c.kind in ('valu', 'trans', 'mfma') else [], 'ds store data WAR'))
        if p.kind == 'salu' and 'm0' in p.dst:
            rules.append((['m0'], 1, lambda c: c.src if c.kind == 'dma' else [], 'm0->DMA'))
        if valu_like and 'exec' in p.dst:
            rules.append((['exec'], 4, lambda c: ['exec'] if c.kind == 'mfma' else [], 'exec->mfma'))
        for regs, need, pred, name in rules:
            regs = set(regs)
            if not regs:
                continue
            dist = 0
            j = idx + 1
            while j < n and dist < need:
                c = seq[j]
                if c.kind not in ('label', 'dir'):
                    if regs & set(pred(c)):
                        bad.append((idx, j, name, need, dist, p.text, c.text))
                        break
                    dist += c.ws
                j += 1
    if verbose:
        for b in bad:
            print('HAZARD %s need %d have %d:\n   [%d] %s\n   [%d] %s' % (b[2], b[3], b[4], b[0], b[5], b[1], b[6]))
    return bad
```

```python
import struct
import sys
import math
from asmlib import Asm, Ins, check_hazards

NAME = 'standalone__convnext_block__vision_kernel'


def f32(x):
    return '0x%08x' % struct.unpack('<I', struct.pack('<f', x))[0]


KG = 2.0 * math.sqrt(2.0 / math.pi) * math.log2(math.e)
SC = -((KG * 0.044715) ** (1.0 / 3.0))
GA = -KG / SC

X_BYTES = 224 * 224 * 192 * 2
DW_BYTES = 49 * 192 * 2
W_BYTES = 192 * 768 * 2

DBS = 32768
OCT = 8096
ROW = 368
QH = 176
DUMMY = 32384
CW = 65536
CWQ = 5184
CWW = 2 * CWQ
R0 = CW + 4 * CWW
R1 = 0
W2OFF = 24576
HIMG = 8192
LDS_BYTES = R0 + 49152

sX, sDW, sW1, sW2, sOUT, sCODE = 's[16:19]', 's[20:23]', 's[24:27]', 's[28:31]', 's[32:35]', 's[36:39]'
sWAVE = 's40'
sGA, sSC = 's60', 's61'
sDELTA = 's62'
sM0B = 's63'
sO1A, sO1B, sO2A, sO2B = 's64', 's65', 's66', 's67'
sLOOP = 's68'

XOFF = 4
WADR = 12
RD_DATA, RD_W = 20, 21
WR_W = 22
RD_RES = 24
STAT = 26
IDENT = 34
RESB = [4, 8, 42, 46]
W1RD = 50
W2RD = 52
DMA1 = 56
DMA2 = 59
OUTA = 62
CACC = 64
HFV = 64
ACC1 = 96
PB = 160
ARING = 192
NRING = 6
TMP = 216
NTMP = 8


def vr(b, n):
    return 'v[%d:%d]' % (b, b + n - 1)


def ar(b, n):
    return 'a[%d:%d]' % (b, b + n - 1)


def cacc(c, q, mu):
    return CACC + 32 * c + 8 * mu + 4 * q


def hf(h, t):
    i = h * 12 + t
    return ar(192 + 4 * i, 4) if i < 16 else vr(HFV + 4 * (i - 16), 4)


def acc2(T, h):
    return ar(32 * T + 16 * h, 16)


def gen(debug=None):
    A = Asm()
    A(f'''
    s_load_dwordx8 s[4:11], s[0:1], 0
    s_load_dwordx2 s[12:13], s[0:1], 32
    s_getpc_b64 s[36:37]
    s_and_b32 s3, s2, 7
    s_lshr_b32 s41, s2, 3
    s_mul_i32 s42, s3, 49
    s_add_u32 s43, s42, 49
    s_lshr_b32 s42, s42, 1
    s_lshr_b32 s43, s43, 1
    s_add_u32 s42, s42, s41
    s_cmp_ge_u32 s42, s43
    s_cbranch_scc1 L_end
    s_mov_b32 s38, L_code_end-L_pc
    s_mov_b32 s39, 0x20000
    v_lshlrev_b32 v1, 7, v0
    buffer_load_dword v2, v1, {sCODE}, 0 offen
    s_cmp_ge_u32 s42, 98
    s_cselect_b32 s43, 98, 0
    s_cselect_b32 s44, 7, 0
    s_sub_u32 s42, s42, s43
    s_mul_i32 s43, s42, 147
    s_lshr_b32 s43, s43, 10
    s_mul_i32 s45, s43, 7
    s_sub_u32 s42, s42, s45
    s_add_u32 s42, s42, s44
    s_lshl_b32 s41, s43, 4
    s_lshl_b32 s42, s42, 4
    s_sub_u32 s41, s41, 3
    s_sub_u32 s42, s42, 3
    s_mul_i32 s43, s41, 224
    s_add_u32 s43, s43, s42
    s_mul_i32 s43, s43, 384
    s_mov_b32 s44, 86016
    s_movk_i32 s45, 384
    s_movk_i32 s46, {ROW}
    s_movk_i32 s47, 224
    v_lshrrev_b32 v3, 6, v0
    v_and_b32 v54, 3, v0
    v_readfirstlane_b32 {sWAVE}, v3
    v_lshl_add_u32 v55, v54, 4, s43
    v_mul_u32_u24 v54, {OCT}, v54
    v_lshrrev_b32 v1, 2, v0
    v_mov_b32 v63, 0x7ff00000
    ''')
    A.ins[2].text = 's_getpc_b64 s[36:37]\nL_pc:'

    def slot_addr(i):
        xo, wa = XOFF + i, WADR + i
        A(f'''
        v_add_u32 v3, {64 * i}, v1
        v_mul_u32_u24 v60, 745, v3
        v_lshrrev_b32 v60, 14, v60
        v_mad_i32_i24 v61, v60, -22, v3
        v_add_u32 v3, s41, v60
        v_add_u32 v62, s42, v61
        v_max_u32 v3, v3, v62
        v_cmp_gt_u32 vcc, s47, v3
        v_mad_u32_u24 v{xo}, v60, s44, v55
        v_mad_u32_u24 v{xo}, v61, s45, v{xo}
        v_cndmask_b32 v{xo}, v63, v{xo}, vcc
        v_mad_u32_u24 v{wa}, v60, s46, v54
        v_lshl_add_u32 v{wa}, v61, 3, v{wa}
        ''')

    A('s_movk_i32 s48, -22')
    _slot_addr = slot_addr

    def slot_addr(i):
        n0 = len(A.ins)
        _slot_addr(i)
        for k in range(n0, len(A.ins)):
            if ', -22,' in A.ins[k].text:
                A.ins[k] = Ins(A.ins[k].text.replace(', -22,', ', s48,'))

    slot_addr(0)
    A(f'''
    s_waitcnt lgkmcnt(0)
    s_mov_b32 s16, s4
    s_mov_b32 s17, s5
    s_mov_b32 s18, {X_BYTES}
    s_mov_b32 s19, 0x20000
    ''')

    def xload(i, c):
        A(f'buffer_load_dwordx4 {ar(32 * c + 4 * i, 4)}, v{XOFF + i}, {sX}, 0 offen offset:{64 * c}')

    xload(0, 0)
    xload(0, 1)
    A(f'''
    s_mov_b32 s20, s6
    s_mov_b32 s21, s7
    s_mov_b32 s22, {DW_BYTES}
    s_mov_b32 s23, 0x20000
    v_and_b32 v3, 63, v0
    v_lshrrev_b32 v60, 3, v3
    v_and_b32 v61, 7, v3
    v_max_u32 v62, v60, v61
    v_cmp_gt_u32 vcc, 7, v62
    v_mad_u32_u24 v62, v60, 7, v61
    v_mul_u32_u24 v62, 384, v62
    s_lshl_b32 s49, {sWAVE}, 4
    v_cndmask_b32 v62, v63, v62, vcc
    ''')
    for c in range(6):
        A(f'buffer_load_dwordx4 {vr(CACC + 32 * c, 4)}, v62, {sDW}, s49 offen offset:{64 * c}')
    A(f'''
    s_mul_i32 s50, {sWAVE}, {CWW}
    s_add_u32 s50, s50, {CW}
    v_mul_u32_u24 v60, {36 * 16}, v60
    v_add_u32 v60, s50, v60
    v_lshrrev_b32 v62, 1, v61
    v_lshl_add_u32 v{WR_W}, v62, 4, v60
    v_and_b32 v62, 1, v61
    v_lshl_add_u32 v{WR_W}, v62, 3, v{WR_W}
    v_add_u32 v{WR_W}, {36 * 16}, v{WR_W}
    v_add_u32 v61, 1, v61
    v_lshrrev_b32 v62, 1, v61
    v_lshl_add_u32 v{WR_W + 1}, v62, 4, v60
    v_and_b32 v62, 1, v61
    v_lshl_add_u32 v{WR_W + 1}, v62, 3, v{WR_W + 1}
    v_add_u32 v{WR_W + 1}, {(36 + 18) * 16}, v{WR_W + 1}
    ''')
    for i in range(1, 8):
        slot_addr(i)
        xload(i, 0)
        xload(i, 1)
    for cp in (2, 4):
        for i in range(8):
            xload(i, cp)
            xload(i, cp + 1)
    A(f'''
    v_and_b32 v3, 63, v0
    v_cmp_gt_u32 vcc, {484 - 448}, v1
    v_and_b32 v60, 15, v3
    v_lshlrev_b32 v60, 3, v60
    v_add_u32 v60, {DUMMY}, v60
    v_cndmask_b32 v{WADR + 7}, v60, v{WADR + 7}, vcc
    ''')
    A(f'''
    v_mov_b32 v56, 0
    v_mov_b32 v57, 0
    v_mov_b32 v58, 0
    v_mov_b32 v59, 0
    v_lshl_add_u32 v60, v3, 4, s50
    ''')
    for k in range(10):
        A(f'ds_write_b128 v60, v[56:59] offset:{1024 * k}')
    A(f'ds_write_b128 v60, v[56:59] offset:{CWW - 1024}')
    A(f'''
    s_mov_b32 s24, s8
    s_mov_b32 s25, s9
    s_mov_b32 s26, {W_BYTES}
    s_mov_b32 s27, 0x20000
    s_mov_b32 s28, s10
    s_mov_b32 s29, s11
    s_mov_b32 s30, {W_BYTES}
    s_mov_b32 s31, 0x20000
    s_mov_b32 s32, s12
    s_mov_b32 s33, s13
    s_mov_b32 s34, {X_BYTES}
    s_mov_b32 s35, 0x20000
    s_mov_b32 {sGA}, {f32(GA)}
    s_mov_b32 {sSC}, {f32(SC)}
    ''')
    A(f'''
    v_and_b32 v60, 7, v3
    v_bfe_u32 v61, v3, 3, 1
    v_lshrrev_b32 v62, 4, v3
    v_add_u32 v60, v60, v62
    v_mul_u32_u24 v61, {8 * ROW}, v61
    v_lshl_add_u32 v{RD_DATA}, v60, 4, v61
    s_mul_i32 s51, {sWAVE}, {OCT}
    v_add_u32 v{RD_DATA}, s51, v{RD_DATA}
    ''')
    A(f'''
    v_and_b32 v60, 3, v3
    v_lshl_add_u32 v60, v60, 2, v62
    v_bfe_u32 v61, v3, 2, 1
    v_mad_u32_u24 v60, v61, 18, v60
    v_bfe_u32 v61, v3, 3, 1
    v_xor_b32 v61, 1, v61
    v_mad_u32_u24 v60, v61, 36, v60
    v_lshl_add_u32 v{RD_W}, v60, 4, s50
    ''')
    A(f'''
    v_bfe_u32 v60, v3, 3, 1
    v_lshlrev_b32 v60, 3, v60
    s_lshl_b32 s52, {sWAVE}, 1
    v_add_u32 v60, s52, v60
    v_and_b32 v61, 7, v3
    v_bfe_u32 v62, v3, 4, 1
    v_lshl_add_u32 v61, v61, 1, v62
    v_lshrrev_b32 v62, 5, v3
    v_mul_u32_u24 v{RD_RES}, {OCT}, v62
    v_mad_u32_u24 v{RD_RES}, v60, s46, v{RD_RES}
    v_lshl_add_u32 v{RD_RES}, v61, 3, v{RD_RES}
    v_add_u32 v{RD_RES}, {3 * ROW + 3 * 8}, v{RD_RES}
    v_add_u32 v{RD_RES + 1}, {2 * OCT}, v{RD_RES}
    s_add_u32 s53, s43, {(3 * 224 + 3) * 384}
    v_lshl_add_u32 v54, v62, 4, s53
    v_mad_u32_u24 v54, v60, s44, v54
    v_mad_u32_u24 v54, v61, s45, v54
    ''')
    A(f'''
    v_bfe_u32 v60, v3, 2, 1
    v_cmp_eq_u32 vcc, v60, v62
    v_and_b32 v61, 1, v3
    v_lshlrev_b32 v61, 4, v61
    v_mov_b32 v60, 0x3f80
    v_lshlrev_b32 v60, v61, v60
    v_cndmask_b32 v60, 0, v60, vcc
    v_bfe_u32 v61, v3, 1, 1
    v_bfe_u32 v62, v3, 3, 2
    v_lshl_add_u32 v61, v62, 1, v61
    ''')
    for k in range(8):
        A(f'''
        v_cmp_eq_u32 vcc, {k}, v61
        s_nop 1
        v_cndmask_b32 v{IDENT + k}, 0, v60, vcc
        ''')
    A(f'''
    v_lshrrev_b32 v60, 5, v3
    v_bfe_u32 v61, v3, 2, 2
    v_lshl_add_u32 v62, v60, 3, v61
    v_lshlrev_b32 v62, 7, v62
    v_bfe_u32 v2, v3, 4, 1
    v_lshl_add_u32 v62, v2, 5, v62
    v_and_b32 v2, 3, v3
    v_lshl_add_u32 v62, v2, 3, v62
    v_bfe_u32 v2, v3, 3, 1
    v_lshl_add_u32 v{W1RD}, v2, 6, v62
    v_xor_b32 v{W1RD + 1}, 64, v{W1RD}
    v_add_u32 v{W1RD}, {R0}, v{W1RD}
    v_add_u32 v{W1RD + 1}, {R0}, v{W1RD + 1}
    ''')
    A(f'''
    v_lshl_add_u32 v62, v60, 2, v61
    v_mul_u32_u24 v62, 384, v62
    v_bfe_u32 v55, v3, 4, 1
    v_lshl_add_u32 v62, v55, 5, v62
    v_and_b32 v55, 1, v3
    v_lshl_add_u32 v62, v55, 4, v62
    v_bfe_u32 v55, v3, 1, 1
    v_lshl_add_u32 v62, v55, 3, v62
    v_add_u32 v62, {R0 + W2OFF}, v62
    v_lshl_add_u32 v{W2RD}, v2, 6, v62
    v_xor_b32 v2, 1, v2
    v_lshl_add_u32 v{W2RD + 1}, v2, 6, v62
    ''')
    A(f'''
    v_lshrrev_b32 v60, 3, v3
    v_mul_u32_u24 v60, 1536, v60
    v_and_b32 v61, 7, v3
    v_bfe_u32 v62, v3, 4, 1
    v_lshlrev_b32 v62, 2, v62
    v_xor_b32 v61, v61, v62
    v_lshl_add_u32 v{DMA1}, v61, 4, v60
    v_add_u32 v{DMA1 + 1}, {12288 - 1024}, v{DMA1}
    v_add_u32 v{DMA1 + 2}, {2 * (12288 - 1024)}, v{DMA1}
    ''')
    A(f'''
    v_lshlrev_b32 v62, 4, v3
    v_xor_b32 v2, 64, v62
    v_cmp_le_u32 vcc, 48, v3
    s_nop 1
    v_cndmask_b32 v{DMA2}, v62, v2, vcc
    v_cmp_gt_u32 vcc, 32, v3
    s_nop 1
    v_cndmask_b32 v{DMA2 + 1}, v62, v2, vcc
    v_cmp_le_u32 vcc, 16, v3
    s_nop 1
    v_cndmask_b32 v{DMA2 + 2}, v62, v2, vcc
    v_mov_b32 v{OUTA}, v54
    v_add_u32 v{OUTA + 1}, s44, v54
    s_mul_i32 {sO1A}, {sWAVE}, {6 * 12288}
    s_add_u32 {sO1B}, {sO1A}, {3 * 12288}
    s_mul_i32 {sO2A}, {sWAVE}, 6144
    s_add_u32 {sO2B}, {sO2A}, 3072
    s_add_u32 {sM0B}, {sO2A}, {R0}
    s_mov_b32 {sDELTA}, {R1 - R0}
    ''')
    for k in range(8):
        A(f'v_mov_b32 v{STAT + k}, 0')

    def dma_w1(g, k):
        L = []
        if k == 0:
            L.append(f's_add_u32 m0, {sM0B}, {3072 * g}')
        L.append(f'buffer_load_dwordx4 v{DMA1 + k}, {sW1}, {sO1B if g else sO1A} offen offset:{1024 * k} lds')
        return L

    def dma_w2(g, k):
        L = []
        if k == 0:
            L.append(f's_add_u32 m0, {sM0B}, {W2OFF + 3072 * g}')
        L.append(f'buffer_load_dwordx4 v{DMA2 + k}, {sW2}, {sO2B if g else sO2A} offen offset:{1024 * k} lds')
        return L

    def cw_writes(c, q):
        L = []
        raw = CACC + 32 * c + 2 * q
        for p in range(2):
            for e in range(4):
                op = 'ds_write_b16_d16_hi' if e & 1 else 'ds_write_b16'
                L.append(f'{op} v{WR_W + p}, v{raw + (e >> 1)} offset:{q * CWQ + e * 66}')
        return L

    def stage_writes(c):
        return [f'ds_write2_b64 v{WADR + i}, {ar(32 * c + 4 * i, 2)}, {ar(32 * c + 4 * i + 2, 2)} offset0:0 offset1:{QH // 8}'
                for i in range(8)]

    def toggle_wadr():
        return [f'v_xor_b32 v{WADR + i}, {DBS}, v{WADR + i}' for i in range(8)]

    WFR = 192
    DFR = 224

    def wread(q, sg):
        return f'ds_read_b128 {ar(WFR + 4 * sg, 4)}, v{RD_W} offset:{q * CWQ + sg * 576}'

    for l in cw_writes(0, 0) + cw_writes(0, 1):
        A(l)
    for sg in range(8):
        A(wread(0, sg))
    for l in stage_writes(0):
        A(l)
    for l in toggle_wadr():
        A(l)

    dcount = [0]
    for c in range(6):
        A('s_waitcnt lgkmcnt(0)')
        A('s_barrier')
        buf = (c & 1) * DBS
        seq = [(q, rho) for q in range(2) for rho in range(14)]
        regs = {}

        def dread(k):
            q, rho = seq[k]
            r = DFR + 4 * (dcount[0] % 8)
            dcount[0] += 1
            regs[k] = r
            return f'ds_read_b128 {ar(r, 4)}, v{RD_DATA} offset:{buf + rho * ROW + q * QH}'

        PD = 6
        for k in range(PD):
            A(dread(k))
        for h in range(2):
            for u2 in range(2):
                o0 = h * ROW // 8
                A(f'ds_read2_b64 {vr(RESB[2 * h + u2], 4)}, v{RD_RES + u2} offset0:{o0} offset1:{o0 + QH // 8}')
        fill = []
        if c > 0:
            for mu in range(4):
                for r in range(8):
                    v = CACC + 32 * (c - 1) + 8 * mu + r
                    fill.append(f'v_add_f32 v{STAT + 2 * mu}, v{STAT + 2 * mu}, v{v}')
                    fill.append(f'v_fmac_f32 v{STAT + 2 * mu + 1}, v{v}, v{v}')
            fill = [fill[(i % 4) * 16 + (i // 4)] for i in range(64)]
        for l in fill[:12]:
            A(l)
        fill = fill[12:]
        extra = {}
        nm = 0
        for k, (q, rho) in enumerate(seq):
            mus = [mu for mu in range(4) if 0 <= rho - 2 * mu <= 7]
            for n_i, mu in enumerate(mus):
                sg = rho - 2 * mu
                d = vr(cacc(c, q, mu), 4)
                A(f'v_mfma_f32_16x16x32_bf16 {d}, {ar(WFR + 4 * sg, 4)}, {ar(regs[k], 4)}, {d if sg else 0}')
                nm += 1
                if n_i == 0 and k + PD < len(seq):
                    A(dread(k + PD))
                if mu == 3:
                    if q == 0:
                        A(wread(1, sg))
                    elif c < 5:
                        A(wread(0, sg))
                if fill:
                    A(fill.pop(0))
            if q == 0 and rho == 5 and c < 5:
                for l in cw_writes(c + 1, 0):
                    A(l)
            if q == 1 and rho == 3 and c < 5:
                for l in cw_writes(c + 1, 1):
                    A(l)
            if q == 0 and rho == 7:
                for h in range(2):
                    for u2 in range(2):
                        A(f'v_mfma_f32_32x32x16_bf16 {acc2(c, h)}, {vr(IDENT + 4 * u2, 4)}, {vr(RESB[2 * h + u2], 4)}, {acc2(c, h) if u2 else 0}')
                for u2 in range(2):
                    A(f'v_xor_b32 v{RD_RES + u2}, {DBS}, v{RD_RES + u2}')
            if c == 1 and q == 1 and rho in (4, 6):
                g = (rho - 4) // 2
                for k2 in range(3):
                    L = dma_w1(g, k2)
                    if len(L) == 2:
                        L.insert(1, 's_nop 0')
                    for l in L:
                        A(l)
        assert not fill
        if c < 5:
            for l in stage_writes(c + 1):
                A(l)
            for l in toggle_wadr():
                A(l)

    A('s_nop 7')
    for r in range(8):
        for mu in range(4):
            v = CACC + 32 * 5 + 8 * mu + r
            A(f'v_add_f32 v{STAT + 2 * mu}, v{STAT + 2 * mu}, v{v}')
            A(f'v_fmac_f32 v{STAT + 2 * mu + 1}, v{v}, v{v}')
    A(f'''
    v_and_b32 v3, 63, v0
    v_lshlrev_b32 v1, 4, v3
    v_lshlrev_b32 v2, 4, v0
    ds_write_b128 v2, {vr(STAT, 4)}
    ds_write_b128 v2, {vr(STAT + 4, 4)} offset:4096
    s_waitcnt lgkmcnt(0)
    s_barrier
    ''')
    SR = [4, 8, 12, 16, 34, 38, 42, 46]
    for pr in range(2):
        for w in range(4):
            A(f'ds_read_b128 {vr(SR[pr * 4 + w], 4)}, v1 offset:{pr * 4096 + w * 1024}')
    A(f'''
    v_lshrrev_b32 v2, 5, v3
    v_mul_u32_u24 v2, {12 * 1024}, v2
    v_and_b32 v20, 31, v3
    v_lshl_add_u32 v2, v20, 4, v2
    s_lshl_b32 s52, {sWAVE}, 9
    s_add_u32 s52, s52, {HIMG}
    v_add_u32 v2, s52, v2
    v_add_u32 v20, {2 * 24 * 1024}, v2
    s_mul_i32 s52, {sWAVE}, {24 * 1024}
    s_add_u32 s52, s52, {HIMG}
    v_add_u32 v1, s52, v1
    s_mov_b32 s53, {f32(1.0 / 192)}
    s_mov_b32 s54, {f32(1e-5)}
    ''')
    for pr in range(2):
        a, b, c_, d = SR[pr * 4:pr * 4 + 4]
        for k in (0, 2):
            A(f'v_pk_add_f32 {vr(a + k, 2)}, {vr(a + k, 2)}, {vr(b + k, 2)}')
            A(f'v_pk_add_f32 {vr(c_ + k, 2)}, {vr(c_ + k, 2)}, {vr(d + k, 2)}')
        for k in (0, 2):
            A(f'v_pk_add_f32 {vr(STAT + 4 * pr + k, 2)}, {vr(a + k, 2)}, {vr(c_ + k, 2)}')
    for mu in range(4):
        A(f'v_mul_f32 v{STAT + 2 * mu}, s53, v{STAT + 2 * mu}')
    for mu in range(4):
        A(f'v_mul_f32 v{4 + mu}, v{STAT + 2 * mu}, v{STAT + 2 * mu}')
    for mu in range(4):
        A(f'v_fma_f32 v{4 + mu}, v{STAT + 2 * mu + 1}, s53, -v{4 + mu}')
    for mu in range(4):
        A(f'v_max_f32 v{4 + mu}, 0, v{4 + mu}')
    for mu in range(4):
        A(f'v_add_f32 v{4 + mu}, s54, v{4 + mu}')
    for mu in range(4):
        A(f'v_rsq_f32 v{4 + mu}, v{4 + mu}')
    for mu in range(4):
        A(f'v_mul_f32 v{4 + mu}, {sSC}, v{4 + mu}')
    for mu in range(4):
        A(f'v_mul_f32 v{STAT + 2 * mu + 1}, v{STAT + 2 * mu}, v{4 + mu}')
    for mu in range(4):
        A(f'v_mov_b32 v{STAT + 2 * mu}, v{4 + mu}')
    PK = [4, 8, 12, 16]
    n = 0
    for c in range(6):
        for mu in range(4):
            b = CACC + 32 * c + 8 * mu
            st = vr(STAT + 2 * mu, 2)
            for k in range(0, 8, 2):
                A(f'v_pk_fma_f32 {vr(b + k, 2)}, {vr(b + k, 2)}, {st}, {st} op_sel:[0,0,1] op_sel_hi:[1,0,1] neg_lo:[0,0,1] neg_hi:[0,0,1]')
            pk = PK[n % 4]
            n += 1
            for k in range(4):
                A(f'v_cvt_pk_bf16_f32 v{pk + k}, v{b + 2 * k}, v{b + 2 * k + 1}')
            adr = 2 if mu < 2 else 20
            A(f'ds_write_b128 v{adr}, {vr(pk, 4)} offset:{(mu & 1) * 24 * 1024 + 2 * c * 1024}')
    A('s_waitcnt lgkmcnt(0)')
    A('s_barrier')
    for t in range(12):
        for h in range(2):
            A(f'ds_read_b128 {hf(h, t)}, v1 offset:{(h * 12 + t) * 1024}')
            if len(A.lg) >= 14:
                A.wait(lg=8)

    def acc1(p, h):
        return ACC1 + 32 * p + 16 * h

    def pb(p, h, u2):
        return PB + 16 * p + 8 * h + 4 * u2

    def g1_slots(hh, p):
        S = []
        for t in range(12):
            rd = [(lambda r, u=u, t=t: f'ds_read_b64_tr_b16 {vr(r + 2 * u, 2)}, v{W1RD + hh} offset:{(16 * t + 4 * u) * 128}') for u in range(2)]
            mf = [(lambda r, h=h, t=t: f'v_mfma_f32_32x32x16_bf16 {vr(acc1(p, h), 16)}, {vr(r, 4)}, {hf(h, t)}, {vr(acc1(p, h), 16) if t else 0}') for h in range(2)]
            S.append((rd, mf))
        return S

    def g2_slots(hh, p, order=None):
        S = []
        order = order or [(T, u2) for u2 in range(2) for T in range(6)]
        for T, u2 in order:
            rd = [(lambda r, u=u, T=T, u2=u2: f'ds_read_b64_tr_b16 {vr(r + 2 * u, 2)}, v{W2RD + (T & 1)} offset:{(32 * hh + 16 * u2 + 8 * u) * 384 + (T >> 1) * 128}') for u in range(2)]
            mf = [(lambda r, h=h, T=T, u2=u2: f'v_mfma_f32_32x32x16_bf16 {acc2(T, h)}, {vr(r, 4)}, {vr(pb(p, h, u2), 4)}, {acc2(T, h)}') for h in range(2)]
            S.append((rd, mf))
        return S

    def gelu_stream(p):
        els = [(h, 8 * u2 + i) for u2 in range(2) for h in range(2) for i in range(8)]
        out = []
        ne = len(els)
        for step in range(ne + 6):
            for st in ((4, 6, 5) if step == ne + 3 else (6, 5, 4, 3, 2, 1, 0)):
                e = step - st
                if not (0 <= e < ne):
                    continue
                h, r = els[e]
                y = acc1(p, h) + r
                t = TMP + e % NTMP
                if st == 0:
                    out.append((f'v_fma_f32 v{t}, v{y}, v{y}, {sGA}', 4))
                elif st == 1:
                    out.append((f'v_mul_f32 v{t}, v{y}, v{t}', 4))
                elif st == 2:
                    out.append((f'v_exp_f32 v{t}, v{t}', 8))
                elif st == 3:
                    out.append((f'v_fma_f32 v{t}, v{t}, {sSC}, {sSC}', 4))
                elif st == 4:
                    out.append((f'v_rcp_f32 v{t}, v{t}', 8))
                elif st == 5:
                    out.append((f'v_mul_f32 v{y}, v{y}, v{t}', 4))
                elif st == 6 and (r & 1):
                    out.append((f'v_cvt_pk_bf16_f32 v{pb(p, h, r >> 3) + ((r & 7) >> 1)}, v{y - 1}, v{y}', 4))
        return out

    ring = [0]
    D = 4

    def run_trip(slots, valu_segs, misc, head_fill=120):
        ns = len(slots)
        ng = 2 * ns
        rreg = {}

        def issue_reads(i):
            r = ARING + 4 * (ring[0] % NRING)
            ring[0] += 1
            rreg[i] = r
            for f in slots[i][0]:
                A(f(r))

        base_cost = [0] * ng
        for g in range(ng):
            if g % 2 == 0 and g // 2 + D < ns:
                base_cost[g] += 8
            base_cost[g] += sum(c for _, c in misc.get(g, []))
        plan = {g: [] for g in range(-1, ng)}
        for fg, lg_, stream in valu_segs:
            stream = list(stream)
            if fg == -1:
                acc = 0
                while stream and acc < head_fill:
                    ins = stream.pop(0)
                    plan[-1].append(ins)
                    acc += ins[1]
                fg = 0
            gaps = list(range(fg, lg_ + 1))
            total = sum(c for _, c in stream) + sum(base_cost[g] for g in gaps)
            per = total / len(gaps)
            cum = 0.0
            used = 0
            for g in gaps:
                cum += per
                used += base_cost[g]
                while stream and (used + stream[0][1] / 2 <= cum or g == gaps[-1]):
                    ins = stream.pop(0)
                    plan[g].append(ins)
                    used += ins[1]
            assert not stream
        for i in range(min(D, ns)):
            issue_reads(i)
        for ins, _ in plan[-1]:
            A(ins)
        A.need(vr(rreg[0], 4), vr(rreg[1], 4))
        for g in range(ng):
            i, k = divmod(g, 2)
            A(slots[i][1][k](rreg[i]))
            if k == 0 and i + D < ns:
                issue_reads(i + D)
            if k == 1 and i % 2 == 1 and i + 1 < ns:
                A.need(*[vr(rreg[j], 4) for j in (i + 1, i + 2) if j < ns])
            for ins, _ in misc.get(g, []):
                A(ins)
            for ins, _ in plan[g]:
                A(ins)

    def dma_misc(first_gap, step):
        misc = {}
        g = first_gap
        for fn in (dma_w1, dma_w2):
            for grp in range(2):
                for k in range(3):
                    L = fn(grp, k)
                    if len(L) == 2:
                        misc.setdefault(g - 1, []).append((L[0], 4))
                    misc.setdefault(g, []).append((L[-1], 24))
                    g += step
        return misc, g

    def advance():
        return [(f's_add_u32 {sO1A}, {sO1A}, 128', 4), (f's_add_u32 {sO1B}, {sO1B}, 128', 4),
                (f's_add_u32 {sO2A}, {sO2A}, {W2OFF}', 4), (f's_add_u32 {sO2B}, {sO2B}, {W2OFF}', 4)]

    def toggle():
        L = [(f'v_add_u32 v{r}, {sDELTA}, v{r}', 4) for r in (W1RD, W1RD + 1, W2RD, W2RD + 1)]
        L += [(f's_sub_u32 {sM0B}, {sM0B}, {sDELTA}', 4), (f's_sub_u32 {sDELTA}, 0, {sDELTA}', 4)]
        return L

    A(f's_add_u32 {sM0B}, {sM0B}, {sDELTA}')
    A(f's_add_u32 {sO1A}, {sO1A}, 128')
    A(f's_add_u32 {sO1B}, {sO1B}, 128')
    A('s_waitcnt vmcnt(0) lgkmcnt(0)')
    A('s_barrier')
    slots = g1_slots(0, 0) + g1_slots(1, 1)
    misc, g = dma_misc(1, 2)
    misc.setdefault(g + 1, []).extend(advance())
    misc.setdefault(47, []).extend(toggle())
    run_trip(slots, [(26, 47, gelu_stream(0))], misc)
    A(f's_mov_b32 {sLOOP}, 11')
    ring[0] = 0
    A('s_waitcnt vmcnt(0) lgkmcnt(0)')
    loop_start = len(A.ins)
    A('L_loop:')
    A('s_barrier')
    slots = g1_slots(0, 0) + g2_slots(0, 0) + g1_slots(1, 1) + g2_slots(1, 1)
    misc, g = dma_misc(5, 4)
    misc.setdefault(g + 4, []).extend(advance()[:2])
    misc.setdefault(g + 8, []).extend(advance()[2:])
    misc.setdefault(93, []).extend(toggle())
    misc.setdefault(94, []).append((f's_sub_u32 {sLOOP}, {sLOOP}, 1', 4))
    run_trip(slots, [(-1, 45, gelu_stream(1)), (46, 95, gelu_stream(0))], misc)
    assert ring[0] % NRING == 0
    A(f's_cmp_lg_u32 {sLOOP}, 0')
    A('s_waitcnt vmcnt(0) lgkmcnt(0)')
    A('s_cbranch_scc1 L_loop')
    loop_end = len(A.ins)
    A('s_barrier')
    order2 = [(T, u2) for T in range(6) for u2 in range(2)]
    slots = g2_slots(0, 0) + g2_slots(1, 1, order2)

    def epi(T, h, k):
        L = []
        b = 64 + 24 * (k % 4)
        for r in range(16):
            L.append((f'v_accvgpr_read_b32 v{b + r}, a{32 * T + 16 * h + r}', 4))
        for r in range(8):
            L.append((f'v_cvt_pk_bf16_f32 v{b + 16 + r}, v{b + 2 * r}, v{b + 2 * r + 1}', 4))
        for h2 in range(2):
            L.append((f'buffer_store_dwordx4 {vr(b + 16 + 4 * h2, 4)}, v{OUTA + h}, {sOUT}, 0 offen offset:{64 * T + 32 * h2}', 24))
        return L

    segs = [(-1, 23, gelu_stream(1))]
    tail = []
    k = 0
    for T in range(6):
        st = epi(T, 0, k) + epi(T, 1, k + 1)
        if T == 0:
            st = [('s_nop 3', 4)] + st
        k += 2
        g0 = 24 + 4 * T + 3 + 2
        if g0 + 3 <= 47:
            segs.append((g0, g0 + 3, st))
        elif g0 <= 47:
            segs.append((g0, 47, st))
        else:
            tail += st
    run_trip(slots, segs, {})
    A('s_nop 11')
    for ins, _ in tail:
        A(ins)
    A('L_end:')
    A('s_endpgm')
    A('L_code_end:')

    seq = A.ins[:loop_end] + A.ins[loop_start:loop_end] + A.ins[loop_end:]
    bad = check_hazards(seq)
    hot = [x for x in A.auto_log if loop_start <= x[0] < loop_end]
    if hot:
        print('auto waits in loop:', hot)
    return A, bad


HEADER = open('standalone__convnext_block__vision.s.ref').read().split('; @launch')[0]


def main():
    A, bad = gen()
    out = HEADER
    out += f'; @launch grid=(200,1,1) block=(256,1,1) lds={LDS_BYTES}\n'
    out += f'''.amdgcn_target "amdgcn-amd-amdhsa--gfx950"
.text
.globl {NAME}
.p2align 8
.type {NAME},@function
{NAME}:
'''
    out += A.text()
    out += f'''.section .rodata,"a"
.p2align 6
.amdhsa_kernel {NAME}
  .amdhsa_next_free_vgpr 512
  .amdhsa_next_free_sgpr 96
  .amdhsa_accum_offset 256
  .amdhsa_group_segment_fixed_size 0
  .amdhsa_kernarg_size 56
  .amdhsa_user_sgpr_count 2
  .amdhsa_user_sgpr_kernarg_segment_ptr 1
  .amdhsa_system_sgpr_workgroup_id_x 1
.end_amdhsa_kernel
'''
    path = sys.argv[1] if len(sys.argv) > 1 else 'standalone__convnext_block__vision.s'
    open(path, 'w').write(out)
    print('written', path, 'instructions', len(A.ins), 'hazards', len(bad))


if __name__ == '__main__':
    main()
```
